```python
import torch

def _softmax(x, axis=-1):
    return torch.softmax(x, dim=axis)
def _gelu(x):
    return torch.nn.functional.gelu(x, approximate="tanh")
def _silu(x):
    return torch.nn.functional.silu(x)
def _sigmoid(x):
    return torch.sigmoid(x)
def _layernorm(x, axis=-1, eps=1e-5):
    m = x.mean(dim=axis, keepdim=True)
    v = x.var(dim=axis, keepdim=True, unbiased=False)
    return (x - m) / torch.sqrt(v + eps)
def _scatter_add(tgt, idx, src, axis=0):
    return tgt.clone().index_add_(axis, idx, src)
def _segment_sum(src, seg, n):
    out = torch.zeros((n,) + src.shape[1:], dtype=src.dtype)
    return out.index_add_(0, seg, src)
def _pad(x, pw):
    flat = tuple(v for pair in reversed(pw) for v in pair)
    return torch.nn.functional.pad(x, flat)

kernel_name = 'standalone__gqa_block_cached__near_ridge'

def setup_inputs():

    _w = (lambda a: (lambda t: t.to(torch.bfloat16) if t.is_floating_point() else t)(torch.as_tensor(a)))
    B, Sq, D = 16, 32, 576
    Hq, Hkv, Sk, Dh = 32, 16, 32, 128
    assert Hq % Hkv == 0, (Hq, Hkv)
    return {
        "x": _w((lambda *s: torch.randn(*s, dtype=torch.bfloat16) * 0.8)(B, Sq, D)),
        "k_cache": _w((lambda *s: torch.randn(*s, dtype=torch.bfloat16) * 0.8)(B, Hkv, Sk, Dh)),
        "v_cache": _w((lambda *s: torch.randn(*s, dtype=torch.bfloat16) * 0.05)(B, Hkv, Sk, Dh)),
        "wq": _w((lambda *s: torch.randn(*s, dtype=torch.bfloat16) * 0.8)(D, Hq * Dh) * (D ** -0.5)),
        "wo": _w((lambda *s: torch.randn(*s, dtype=torch.bfloat16) * 0.05)(Hq * Dh, D) * ((Hq * Dh) ** -0.5)),
    }

def reference(x, k_cache, v_cache, wq, wo):
    B, Sq, D = x.shape
    Hq, Dh = 32, 128
    Hkv = k_cache.shape[1]
    rep = Hq // Hkv
    q = (lambda x, *d: x.permute(*d))((x @ wq).reshape(B, Sq, Hq, Dh), 0, 2, 1, 3)
    k = (lambda x, n, axis: torch.repeat_interleave(x, n, dim=axis))(k_cache, rep, axis=1)
    v = (lambda x, n, axis: torch.repeat_interleave(x, n, dim=axis))(v_cache, rep, axis=1)
    scores = torch.einsum("bhqd,bhkd->bhqk", q, k) * (Dh ** -0.5)
    p = _softmax(scores, axis=-1)
    o = torch.einsum("bhqk,bhkd->bhqd", p, v)
    return (lambda x, *d: x.permute(*d))(o, 0, 2, 1, 3).reshape(B, Sq, Hq * Dh) @ wo
```

```python
HEADER = """; Kernarg layout for this problem (64 bytes, ptrs only, base s[0:1]):
"""
KN = "standalone__gqa_block_cached__near_ridge_kernel"

class Asm:
    def __init__(self):
        self.lines = []
    def __call__(self, s):
        for ln in s.strip("\n").split("\n"):
            self.lines.append("    " + ln.strip() if not ln.strip().endswith(":") else ln.strip())
    def label(self, l):
        self.lines.append(l + ":")
    def text(self):
        return "\n".join(self.lines) + "\n"

def kernel_text(name, body, vgpr, sgpr=102, accum=None, extra_dirs=""):
    if accum is None:
        accum = (vgpr + 3) // 4 * 4
    t = f""".globl {name}
.p2align 8
.type {name},@function
{name}:
{body}"""
    d = f""".p2align 6
.amdhsa_kernel {name}
  .amdhsa_next_free_vgpr {vgpr}
  .amdhsa_next_free_sgpr {sgpr}
  .amdhsa_accum_offset {accum}
  .amdhsa_group_segment_fixed_size 0
  .amdhsa_kernarg_size 64
  .amdhsa_user_sgpr_count 2
  .amdhsa_user_sgpr_kernarg_segment_ptr 1
  .amdhsa_system_sgpr_workgroup_id_x 1
{extra_dirs}.end_amdhsa_kernel
"""
    return t, d

def module_text(launch_lines, kernels):
    s = HEADER + "".join(l + "\n" for l in launch_lines)
    s += '.amdgcn_target "amdgcn-amd-amdhsa--gfx950"\n.text\n'
    for t, d in kernels:
        s += t
    s += '.section .rodata,"a"\n'
    for t, d in kernels:
        s += d
    return s
```

```python
import re

REG = re.compile(r'\b([vas])(\d+)\b|\b([vas])\[(\d+):(\d+)\]|\b(vcc|exec|m0)(_lo|_hi)?\b')
TRANS = ('v_exp_', 'v_log_', 'v_rcp_', 'v_rsq_', 'v_sqrt_', 'v_sin_', 'v_cos_')

def regs_of(op):
    out = set()
    for m in REG.finditer(op):
        if m.group(1):
            out.add((m.group(1), int(m.group(2))))
        elif m.group(3):
            for i in range(int(m.group(4)), int(m.group(5)) + 1):
                out.add((m.group(3), i))
        else:
            out.add((m.group(6), 0))
    return out

class Ins:
    def __init__(self, text):
        self.text = text
        t = text.split(';')[0].strip()
        self.label = t.endswith(':')
        self.op = t.split()[0] if t else ''
        rest = t[len(self.op):].strip()
        ops = []; depth = 0; cur = ''
        for ch in rest:
            if ch == '[': depth += 1
            if ch == ']': depth -= 1
            if ch == ',' and depth == 0:
                ops.append(cur.strip()); cur = ''
            else:
                cur += ch
        if cur.strip(): ops.append(cur.strip())
        self.ops = ops
        op = self.op
        self.cls = 'other'
        self.defs = set(); self.uses = set()
        self.srcC = set(); self.srcAB = set()
        self.states = 1
        self.lds_dma = False
        self.wide_store = set()
        self.dpp = ('dpp' in op) or (' row_' in t) or ('quad_perm' in t)
        if self.label or not op or op.startswith('.'):
            self.states = 0; self.cls = 'label' if self.label else 'dir'; return
        if op == 's_nop':
            self.states = int(ops[0], 0) + 1; self.cls = 'salu'; return
        R = [regs_of(o) for o in ops]
        allr = set().union(*R) if R else set()
        if op.startswith('v_mfma'):
            self.cls = 'mfma'
            self.defs = R[0]; self.srcAB = R[1] | R[2]; self.srcC = R[3]; self.uses = self.srcAB | self.srcC
            self.passes = 8 if '32x32x16' in op else 4
        elif op.startswith('v_'):
            self.cls = 'valu'
            self.trans = op.startswith(TRANS)
            if op.startswith('v_swap') or ('permlane' in op and 'swap' in op):
                self.defs = R[0] | R[1]; self.uses = R[0] | R[1]
            elif op.startswith('v_cmp'):
                self.defs = R[0]; self.uses = set().union(*R[1:])
                if op.startswith('v_cmpx'): self.defs |= {('exec', 0)}
            elif '_co_' in op:
                self.defs = R[0] | R[1]; self.uses = set().union(*R[2:])
            elif op == 'v_nop':
                pass
            else:
                self.defs = R[0]; self.uses = set().union(*R[1:]) if len(R) > 1 else set()
                if op.startswith(('v_fmac', 'v_mac', 'v_pk_fmac', 'v_dot2c', 'v_writelane')): self.uses |= R[0]
                if op.startswith('v_cndmask') and len(ops) == 3: self.uses |= {('vcc', 0)}
        elif op.startswith(('buffer_', 'global_')):
            self.cls = 'vmem'
            self.lds_dma = (' lds' in (' ' + t)) and 'load' in op
            if 'load' in op and not self.lds_dma:
                self.defs = R[0]; self.uses = set().union(*R[1:])
            elif 'atomic' in op and ' sc0' in t:
                self.defs = R[0]; self.uses = allr
            else:
                self.uses = allr
                if 'store' in op and ('x3' in op or 'x4' in op):
                    self.wide_store = R[0] if op.startswith('buffer') else R[1]
            if self.lds_dma: self.uses |= {('m0', 0)}
        elif op.startswith('ds_'):
            self.cls = 'ds'
            if 'read' in op or 'permute' in op:
                self.defs = R[0]; self.uses = set().union(*R[1:])
            else:
                self.uses = allr
        elif op.startswith('s_'):
            self.cls = 'salu'
            if op.startswith(('s_cmp', 's_cbranch', 's_branch', 's_waitcnt', 's_barrier', 's_endpgm', 's_sleep', 's_setprio', 's_bitcmp')):
                self.uses = allr
            else:
                self.defs = R[0] if R else set(); self.uses = set().union(*R[1:]) if len(R) > 1 else set()

def isv(r): return r[0] in ('v', 'a')
def iss(r): return r[0] in ('s', 'vcc', 'exec')

def need(p, c):
    n = 0
    if p.cls == 'valu':
        vd = {r for r in p.defs if isv(r)}
        sd = {r for r in p.defs if iss(r)}
        if c.cls == 'mfma' and vd & c.uses: n = max(n, 2)
        if c.cls == 'valu':
            if p.trans and (vd & (c.uses | c.defs)): n = max(n, 1)
            if c.op.startswith(('v_readfirstlane', 'v_readlane')) and vd & c.uses: n = max(n, 1)
            if 'permlane' in c.op and vd & c.uses: n = max(n, 2)
            if c.dpp and vd & c.uses: n = max(n, 2)
            if sd & c.uses: n = max(n, 4 if c.op.startswith(('v_readlane', 'v_writelane')) else 2)
            if ('exec', 0) in sd: n = max(n, 5)
        if c.cls == 'mfma' and ('exec', 0) in sd: n = max(n, 4)
        if c.cls == 'vmem' and sd & c.uses: n = max(n, 5)
    if p.cls == 'mfma':
        lat = 8 if p.passes == 4 else 12
        if c.cls in ('valu', 'vmem', 'ds') and p.defs & (c.uses | c.defs): n = max(n, lat)
        if c.cls == 'mfma':
            if p.defs & c.srcAB: n = max(n, lat)
            if p.defs & c.srcC and p.defs != c.srcC: n = max(n, lat)
            if p.defs & c.defs and p.defs != c.srcC: n = max(n, lat)
        if c.cls == 'valu' and p.srcC & c.defs: n = max(n, 3 if p.passes == 4 else 7)
    if p.cls == 'salu' and ('m0', 0) in p.defs and c.lds_dma: n = max(n, 1)
    if p.cls == 'vmem' and p.wide_store:
        if p.wide_store & c.defs: n = max(n, 2 if c.cls == 'valu' else 1)
    return n

class Prog:
    def __init__(self):
        self.ins = []
        self.vm = []
        self.lg = []
    def __call__(self, s, tag=None):
        for ln in s.strip('\n').split('\n'):
            ln = ln.strip()
            if not ln or ln.startswith(';'):
                continue
            i = Ins(ln)
            self.ins.append(i)
            if i.cls == 'vmem': self.vm.append(tag)
            if i.cls == 'ds': self.lg.append(tag)
    def wait_vm(self, tag):
        idx = max(k for k, t in enumerate(self.vm) if t == tag)
        n = len(self.vm) - 1 - idx
        assert n <= 63, n
        self.vm = self.vm[idx + 1:]
        self(f"s_waitcnt vmcnt({n})")
    def wait_vm_all(self):
        self.vm = []
        self("s_waitcnt vmcnt(0)")
    def wait_lg(self, tag):
        if tag not in self.lg: return
        idx = max(k for k, t in enumerate(self.lg) if t == tag)
        n = len(self.lg) - 1 - idx
        assert n <= 15, n
        self.lg = self.lg[idx + 1:]
        self(f"s_waitcnt lgkmcnt({n})")
    def wait_lg_all(self):
        self.lg = []
        self("s_waitcnt lgkmcnt(0)")
    def text(self):
        out = []
        nn = 0
        for c in self.ins:
            if c.cls not in ('label', 'dir'):
                dist = 0; req = 0
                for p in reversed(out):
                    if dist >= 12: break
                    if p.cls not in ('label', 'dir'):
                        r = need(p, c) - dist
                        req = max(req, r)
                    dist += p.states
                if req > 0:
                    out.append(Ins(f"s_nop {req-1}")); nn += 1
            out.append(c)
        self.nops = nn
        return "\n".join((i.text if i.label else "    " + i.text) for i in out) + "\n"
    def maxv(self):
        mv = 0; ma = -1
        for i in self.ins:
            for r in i.defs | i.uses:
                if r[0] == 'v': mv = max(mv, r[1])
                if r[0] == 'a': ma = max(ma, r[1])
        return mv + 1, ma + 1
```

```python
import sys, argparse, re
from gen_common import *
from prog import Prog

ap = argparse.ArgumentParser()
ap.add_argument("out")
ap.add_argument("--mode", default="list3")
ap.add_argument("--round_s", type=int, default=1)
ap.add_argument("--ahead", type=int, default=4)
ap.add_argument("--stamps", type=int, default=0)
ap.add_argument("--pf", type=int, default=1, help="code prefetch")
args = ap.parse_args()

O_OFF = 0x0
P_OFF = 0x800000
STAMP_OFF = 0x8000000

S_W, S_S, S_J, S_BP, S_H, S_CK = 3, 4, 5, 6, 7, 8
S_W1024 = 9
SRD_X, SRD_K, SRD_V, SRD_WQ, SRD_WO, SRD_OUT, SRD_WS = 32, 36, 40, 44, 48, 52, 56
def srd(b): return f"s[{b}:{b+3}]"
V_L = 1
V_WQ, V_X, V_K, V_V = 10, 11, 12, 13
V_A = 14
V_B = 22
V_WO = 24
V_OG = 33
V_PS, V_PL, V_OUT, V_TAG = 34, 35, 36, 37
XF = 40
KF = 112
QA = 144
AF = 176
QF = 208
SA = 224
T0 = 232
def vr(b, n=4): return f"v[{b}:{b+n-1}]"

stamp_n = [0]
def stamp(p, real=False):
    if not args.stamps: return
    k = stamp_n[0]; stamp_n[0] += 1
    p(f"{'s_memrealtime' if real else 's_memtime'} s[{64+2*k}:{65+2*k}]")

def stamps_out(p, slotbase):
    if not args.stamps: return
    stamp(p, True)
    n = stamp_n[0]
    p(f"""
    s_waitcnt lgkmcnt(0)
    s_lshl_b32 s60, s2, 2
    s_add_u32 s60, s60, s{S_W}
    s_lshl_b32 s60, s60, 7
    s_add_u32 s60, s60, {STAMP_OFF + slotbase}
    v_mov_b32 v2, s60
    s_mov_b64 exec, 1
    """)
    for k in range(n):
        p(f"v_mov_b32 v4, s{64+2*k}\nv_mov_b32 v5, s{65+2*k}")
        p(f"buffer_store_dwordx2 v[4:5], v2, {srd(SRD_WS)}, 0 offen offset:{8*k}")
        p("s_nop 1")
    stamp_n[0] = 0

def prologue(p, name, codebytes):
    stamp(p, True); stamp(p)
    p(f"""
    s_load_dwordx16 s[16:31], s[0:1], 0
    s_cmp_ge_u32 s2, 256
    s_cbranch_scc1 L_end_{name}
    v_and_b32 v{V_L}, 63, v0
    v_lshrrev_b32 v2, 6, v0
    """)
    if args.pf:
        p(f"""
        s_getpc_b64 s[10:11]
        v_lshlrev_b32 v3, 7, v0
        v_min_u32 v3, {codebytes}, v3
        global_load_dword v39, v3, s[10:11]
        """, tag='pf')
    p(f"""
    v_readfirstlane_b32 s{S_W}, v2
    s_and_b32 s{S_S}, s2, 7
    s_bfe_u32 s{S_J}, s2, 0x20003
    s_lshr_b32 s{S_BP}, s2, 5
    s_lshl_b32 s{S_H}, s{S_S}, 2
    s_add_u32 s{S_H}, s{S_H}, s{S_J}
    s_lshl_b32 s{S_W1024}, s{S_W}, 10
    """)

def srds(p, which):
    tbl = {'x': (SRD_X, 16, 16*36864), 'k': (SRD_K, 18, 16*131072), 'v': (SRD_V, 20, 16*131072),
           'wq': (SRD_WQ, 22, 576*8192), 'wo': (SRD_WO, 24, 4096*1152), 'out': (SRD_OUT, 26, 512*1152),
           'ws': (SRD_WS, 30, 0x10000000)}
    for nm in which:
        b, src, size = tbl[nm]
        p(f"s_mov_b32 s{b+2}, {size}\ns_mov_b32 s{b+3}, 0x00020000")
    p("s_waitcnt lgkmcnt(0)")
    for nm in which:
        b, src, size = tbl[nm]
        p(f"s_mov_b64 s[{b}:{b+1}], s[{src}:{src+1}]")

def addr_phaseA(p):
    L = V_L
    p(f"""
    v_lshrrev_b32 v2, 4, v{L}
    v_and_b32 v3, 15, v{L}
    v_and_b32 v4, 1, v2
    v_lshlrev_b32 v5, 1, v2
    v_and_b32 v5, 4, v5
    v_or_b32 v4, v4, v5
    s_lshl_b32 s12, s{S_W}, 2
    s_and_b32 s13, s12, 8
    v_or_b32 v4, s13, v4
    v_xor_b32 v4, v4, v3
    v_lshlrev_b32 v4, 4, v4           ; (q'^f)*16
    v_add_u32 v5, s12, v2             ; 4w + r
    s_lshl_b32 s13, s{S_H}, 8
    v_lshl_add_u32 v{V_WQ}, v5, 13, v4
    v_add_u32 v{V_WQ}, s13, v{V_WQ}
    v_lshl_add_u32 v{V_V}, v5, 8, v4
    ; x: (64bp+16w+(l&15))*1152 + g*16
    s_lshl_b32 s12, s{S_BP}, 6
    s_lshl_b32 s13, s{S_W}, 4
    s_add_u32 s12, s12, s13
    v_add_u32 v5, s12, v3
    v_mul_u32_u24 v5, 1152, v5
    v_lshl_add_u32 v{V_X}, v2, 4, v5
    ; rotation
    s_lshl_b32 s{S_CK}, s{S_J}, 1
    s_add_u32 s{S_CK}, s{S_CK}, s{S_BP}
    s_and_b32 s{S_CK}, s{S_CK}, 7
    s_lshl_b32 s{S_CK}, s{S_CK}, 7
    """)

def addr_phaseA2(p):
    L = V_L
    p(f"""
    ; K: key(i)=8(i>>2)+(i&3); *256 + g*16
    v_lshrrev_b32 v2, 4, v{L}
    v_and_b32 v3, 3, v{L}             ; c
    v_bfe_u32 v4, v{L}, 2, 2          ; r
    v_lshl_add_u32 v5, v4, 3, v3
    v_lshlrev_b32 v5, 8, v5
    v_lshl_add_u32 v{V_K}, v2, 4, v5
    v_lshl_add_u32 v5, v2, 3, v4      ; 8g+r
    v_lshlrev_b32 v5, 8, v5
    v_and_b32 v6, 1, v4
    v_xor_b32 v6, v6, v3              ; c^r0
    v_and_b32 v7, 2, v4
    v_lshl_or_b32 v6, v7, 1, v6
    v_and_b32 v7, 1, v2
    v_lshl_or_b32 v6, v7, 3, v6       ; pos
    v_lshl_add_u32 v5, v6, 4, v5
    v_and_b32 v7, 1, v3
    v_lshl_add_u32 v{V_A}, v7, 3, v5
    """)
    for u in range(4):
        for e in range(2):
            if u == 0 and e == 0: continue
            p(f"v_xor_b32 v{V_A+2*u+e}, {(u<<6)^(e<<3)}, v{V_A}")
    p(f"""
    s_lshl_b32 s14, s{S_BP}, 18
    s_lshr_b32 s15, s{S_H}, 1
    s_lshl_b32 s15, s15, 13
    s_add_u32 s14, s14, s15
    s_lshr_b32 s15, s{S_W}, 1
    s_lshl_b32 s15, s15, 17
    s_add_u32 s15, s14, s15
    """)

def issue_chunk(p, i):
    p(f"s_lshl_b32 s60, s{S_CK}, 12")
    p(f"buffer_load_dwordx4 {vr(XF+8*i)}, v{V_X}, {srd(SRD_X)}, s{S_CK} offen", tag=('c', i))
    p(f"buffer_load_dwordx4 {vr(XF+8*i+4)}, v{V_X}, {srd(SRD_X)}, s{S_CK} offen offset:64", tag=('c', i))
    for n in range(4):
        p(f"s_add_u32 m0, s{S_W1024}, {i*16384 + n*4096}")
        if n: p(f"s_add_u32 s61, s60, {n*131072}")
        p(f"buffer_load_dwordx4 v{V_WQ}, {srd(SRD_WQ)}, s{61 if n else 60} offen lds", tag=('c', i))
    if i < 8:
        p(f"""
        s_add_u32 s{S_CK}, s{S_CK}, 128
        s_cmp_eq_u32 s{S_CK}, {9*128}
        s_cselect_b32 s{S_CK}, 0, s{S_CK}
        """)

def issue_k(p):
    for kt in range(2):
        for u in range(4):
            p(f"buffer_load_dwordx4 {vr(KF+16*kt+4*u)}, v{V_K}, {srd(SRD_K)}, s15 offen offset:{1024*kt+64*u}", tag='k')
def issue_v(p):
    for bb in range(2):
        for n in range(2):
            p(f"s_add_u32 m0, s{S_W1024}, {147456 + bb*8192 + n*4096}")
            p(f"s_add_u32 s61, s14, {bb*131072 + n*4096}")
            p(f"buffer_load_dwordx4 v{V_V}, {srd(SRD_V)}, s61 offen lds", tag='v')

def mfma(d, a, b, c):
    cc = "0" if c is None else vr(c)
    return f"v_mfma_f32_16x16x32_bf16 {vr(d)}, {vr(a)}, {vr(b)}, {cc}"

def gemm_stream(p, items, extra=None, depth=7):
    n = len(items)
    def rd(k):
        a0, o0, a1, o1, *_ = items[k]
        f = AF + 4 * (k % 8)
        p(f"ds_read_b64_tr_b16 {vr(f,2)}, v{a0} offset:{o0}", tag=('f', k))
        p(f"ds_read_b64_tr_b16 {vr(f+2,2)}, v{a1} offset:{o1}", tag=('f', k))
    for k in range(min(depth, n)): rd(k)
    for k in range(n):
        _, _, _, _, d, b, first = items[k]
        p.wait_lg(('f', k))
        p(mfma(d, AF + 4 * (k % 8), b, None if first else d))
        if k + depth < n: rd(k + depth)
        if extra and k in extra: extra[k]()

def phaseA(p, after_issue=None):
    A = args.ahead
    for i in range(min(A, 9)): issue_chunk(p, i)
    addr_phaseA2(p)
    todo = [(lambda i=i: issue_chunk(p, i)) for i in range(A, 9)] + [lambda: issue_k(p), lambda: issue_v(p)]
    for i in range(9):
        p.wait_vm(('c', i))
        p("s_barrier")
        if i == 0: stamp(p)
        if i in (4, 8):
            for k in range(8): p(f"v_add_u32 v{V_A+k}, 0x10000, v{V_A+k}")
        items = []
        for st in range(2):
            for u in range(4):
                for e in range(2):
                    off = (i % 4) * 16384 + st * 8192
                    items.append((V_A+2*u+e, off, V_A+2*u+e, off + 1024, QA + 4*(2*u+e), XF + 8*i + 4*st, i == 0 and st == 0))
        extra = {}
        if todo:
            extra[0] = todo.pop(0)
        gemm_stream(p, items, extra)
    while todo: todo.pop(0)()
    stamp(p)
    for u in range(4):
        for e in range(2):
            t = QA + 4*(2*u+e)
            p(f"v_cvt_pk_bf16_f32 v{QF+4*u+2*e}, v{t}, v{t+1}")
            p(f"v_cvt_pk_bf16_f32 v{QF+4*u+2*e+1}, v{t+2}, v{t+3}")
    p("s_mov_b32 exec_lo, 0xffff0000\ns_mov_b32 exec_hi, 0xffff0000")
    for u in range(4):
        p(f"v_swap_b32 v{QF+4*u}, v{QF+4*u+2}")
        p(f"v_swap_b32 v{QF+4*u+1}, v{QF+4*u+3}")
    p("s_mov_b64 exec, -1")
    p.wait_vm('k')
    for u in range(4):
        for kt in range(2):
            p(mfma(SA+4*kt, KF+16*kt+4*u, QF+4*u, None if u == 0 else SA+4*kt))
    p.wait_vm('v')
    p("s_barrier")
    p(f"s_lshr_b32 s60, s{S_W}, 1\ns_lshl_b32 s60, s60, 13")
    for k in range(8): p(f"v_add_u32 v{V_A+k}, s60, v{V_A+k}")
    VF = XF
    for k in range(8):
        if k == 7: p.wait_lg(('v', 0))
        p(f"ds_read_b64_tr_b16 {vr(VF+4*k,2)}, v{V_A+k} offset:16384", tag=('v', k))
        p(f"ds_read_b64_tr_b16 {vr(VF+4*k+2,2)}, v{V_A+k} offset:{16384+1024}", tag=('v', k))
    stamp(p)
    S = SA
    T = T0
    if args.round_s:
        for k in range(4): p(f"v_cvt_pk_bf16_f32 v{T+k}, v{S+2*k}, v{S+2*k+1}")
        p(f"v_mov_b32 v{T+8}, 0x3db504f3")
        for k in range(4):
            p(f"v_lshlrev_b32 v{S+2*k}, 16, v{T+k}")
            p(f"v_and_b32 v{S+2*k+1}, 0xffff0000, v{T+k}")
        for k in range(8): p(f"v_mul_f32 v{S+k}, v{S+k}, v{T+8}")
        for k in range(4): p(f"v_cvt_pk_bf16_f32 v{T+k}, v{S+2*k}, v{S+2*k+1}")
        for k in range(4):
            p(f"v_lshlrev_b32 v{S+2*k}, 16, v{T+k}")
            p(f"v_and_b32 v{S+2*k+1}, 0xffff0000, v{T+k}")
        cmul = "0x3fb8aa3b"
    else:
        cmul = "0x3e0293ee"
    p(f"""
    v_max3_f32 v{T}, v{S}, v{S+1}, v{S+2}
    v_max3_f32 v{T+1}, v{S+3}, v{S+4}, v{S+5}
    v_max3_f32 v{T}, v{T}, v{S+6}, v{S+7}
    v_max_f32 v{T}, v{T}, v{T+1}
    v_mov_b32 v{T+1}, v{T}
    v_permlane32_swap_b32 v{T}, v{T+1}
    v_max_f32 v{T}, v{T}, v{T+1}
    v_mov_b32 v{T+1}, v{T}
    v_permlane16_swap_b32 v{T}, v{T+1}
    v_max_f32 v{T}, v{T}, v{T+1}
    v_mov_b32 v{T+2}, {cmul}
    """)
    for k in range(8): p(f"v_sub_f32 v{S+k}, v{S+k}, v{T}")
    for k in range(8): p(f"v_mul_f32 v{S+k}, v{S+k}, v{T+2}")
    for k in range(8): p(f"v_exp_f32 v{S+k}, v{S+k}")
    p(f"""
    v_add_f32 v{T}, v{S}, v{S+1}
    v_add_f32 v{T+1}, v{S+2}, v{S+3}
    v_add_f32 v{T+2}, v{S+4}, v{S+5}
    v_add_f32 v{T+3}, v{S+6}, v{S+7}
    v_add_f32 v{T}, v{T}, v{T+1}
    v_add_f32 v{T+2}, v{T+2}, v{T+3}
    v_add_f32 v{T}, v{T}, v{T+2}
    v_mov_b32 v{T+1}, v{T}
    v_permlane32_swap_b32 v{T}, v{T+1}
    v_add_f32 v{T}, v{T}, v{T+1}
    v_mov_b32 v{T+1}, v{T}
    v_permlane16_swap_b32 v{T}, v{T+1}
    v_add_f32 v{T}, v{T}, v{T+1}
    v_rcp_f32 v{T}, v{T}
    """)
    for k in range(8): p(f"v_mul_f32 v{S+k}, v{S+k}, v{T}")
    PF = T + 4
    for k in range(4): p(f"v_cvt_pk_bf16_f32 v{PF+k}, v{S+2*k}, v{S+2*k+1}")
    p.wait_lg_all()
    for k in range(8): p(mfma(QA+4*k, VF+4*k, PF, None))
    stamp(p)

def o_pack_granules(p, G):
    for d in range(16):
        t = QA + 2*d
        p(f"v_cvt_pk_bf16_f32 v{G + 4*(d//3) + d%3}, v{t}, v{t+1}")
    for gi in range(6): p(f"v_mov_b32 v{G+4*gi+3}, v{V_TAG}")
    p(f"v_mov_b32 v{G+21}, v{V_TAG}\nv_mov_b32 v{G+22}, v{V_TAG}")

def addr_phaseB(p):
    L = V_L
    p(f"""
    v_lshrrev_b32 v2, 4, v{L}         ; g
    v_and_b32 v3, 3, v{L}             ; c
    v_bfe_u32 v4, v{L}, 2, 2          ; r
    v_lshl_add_u32 v5, v2, 3, v4      ; 8g+r
    v_and_b32 v6, 1, v2
    v_lshlrev_b32 v6, 2, v6           ; 4*g0
    v_or_b32 v7, v5, v6
    v_xor_b32 v8, 4, v7
    v_mul_u32_u24 v3, 72, v3
    v_mad_u32_u24 v{V_B}, v7, s62, v3
    v_mad_u32_u24 v{V_B+1}, v8, s62, v3
    """)
    for i in range(9):
        p(f"""
        v_add_u32 v2, {64*i}, v{L}
        v_mul_u32_u24 v3, s63, v2
        v_lshrrev_b32 v3, 16, v3
        v_mul_u32_u24 v3, 864, v3
        v_lshl_add_u32 v{V_WO+i}, v2, 4, v3
        """)

def consts_phaseB(p):
    p(f"s_movk_i32 s62, 288\ns_movk_i32 s63, 3641")

def issue_wo(p, q):
    p(f"""
    s_add_u32 s60, s{S_J}, {q}
    s_and_b32 s60, s60, 3
    s_lshl_b32 s61, s{S_S}, 2
    s_add_u32 s60, s60, s61
    s_lshl_b32 s60, s60, 2
    s_add_u32 s60, s60, s{S_W}
    s_mul_i32 s60, s60, {32*1152}
    s_mul_i32 s61, s{S_J}, 288
    s_add_u32 s60, s60, s61
    s_mul_i32 s61, s{S_W}, 9216
    """)
    for i in range(9):
        p(f"s_add_u32 m0, s61, {q*36864 + i*1024}")
        p(f"buffer_load_dwordx4 v{V_WO+i}, {srd(SRD_WO)}, s60 offen lds", tag=('wo', q))

OF = 40
OA = 104
GL = 208
def phaseB_items(q):
    items = []
    for u in range(4):
        for t in range(9):
            off = (q % 2) * 36864 + u * 9216 + 8 * t
            items.append((V_B, off, V_B+1, off, OA + 4*t, OF + 16*q + 4*u, q == 0 and u == 0))
    return items

def unpack_granules(p, G, dst):
    for d in range(16): p(f"v_mov_b32 v{dst+d}, v{G + 4*(d//3) + d%3}")

def addr_partial(p):
    L = V_L
    p(f"""
    v_bfe_u32 v2, v{L}, 1, 3          ; owner = (l&15)>>1
    v_mul_u32_u24 v2, 24576, v2
    v_and_b32 v3, 1, v{L}
    v_lshrrev_b32 v4, 4, v{L}
    v_lshl_add_u32 v3, v3, 2, v4
    v_lshl_add_u32 v{V_PS}, v3, 4, v2
    s_lshl_b32 s60, s{S_BP}, 2
    s_add_u32 s60, s60, s{S_J}
    s_mul_i32 s60, s60, 196608
    s_mul_i32 s61, s{S_W}, 6144
    s_add_u32 s60, s60, s61
    s_add_u32 s60, s60, {P_OFF}
    s_mul_i32 s61, s{S_S}, 768
    s_add_u32 s12, s60, s61
    s_mul_i32 s61, s{S_S}, 24576
    s_add_u32 s13, s60, s61
    v_mul_u32_u24 v2, 768, v4
    v_and_b32 v3, 15, v{L}
    v_lshl_add_u32 v{V_PL}, v3, 4, v2
    v_bfe_u32 v2, v{L}, 3, 3
    v_mul_u32_u24 v2, 12, v2
    v_and_b32 v3, 3, v{L}
    v_mul_u32_u24 v3, 72, v3
    v_add_u32 v2, v2, v3
    v_bfe_u32 v3, v{L}, 2, 1
    v_mul_u32_u24 v3, 1152, v3
    v_add_u32 v{V_OUT}, v2, v3
    s_lshl_b32 s60, s{S_BP}, 6
    s_lshl_b32 s61, s{S_W}, 4
    s_add_u32 s60, s60, s61
    s_lshl_b32 s61, s{S_S}, 1
    s_add_u32 s60, s60, s61
    s_mul_i32 s60, s60, 1152
    s_mul_i32 s61, s{S_J}, 288
    s_add_u32 s11, s60, s61
    """)

def partial_store(p, G, flags=""):
    for d in range(18):
        t = OA + 2*d
        p(f"v_cvt_pk_bf16_f32 v{G + 4*(d//3) + d%3}, v{t}, v{t+1}")
    for gi in range(6): p(f"v_mov_b32 v{G+4*gi+3}, v{V_TAG}")
    for gi in range(6):
        p(f"buffer_store_dwordx4 {vr(G+4*gi)}, v{V_PS}, {srd(SRD_WS)}, s12 offen offset:{128*gi}{flags}", tag='ps')

SEL = 144
def selectors(p):
    L = V_L
    p(f"""
    v_and_b32 v2, 1, v{L}
    v_lshlrev_b32 v2, 4, v2
    v_mov_b32 v3, 0x3f80
    v_lshlrev_b32 v3, v2, v3
    v_bfe_u32 v4, v{L}, 1, 3          ; i>>1 : 2b + (X?0:1)
    """)
    for k in range(14):
        if k % 4 < 2: p(f"v_mov_b32 v{SEL+k}, 0")
    for b in range(3):
        for xy in range(2):
            p(f"v_cmp_eq_u32 vcc, {2*b+xy}, v4")
            p(f"v_cndmask_b32 v{SEL+4*b+2+xy}, 0, v3, vcc")

def partial_load(p, G, flags=""):
    for a in range(2):
        for b in range(3):
            p(f"buffer_load_dwordx4 {vr(G+4*(3*a+b))}, v{V_PL}, {srd(SRD_WS)}, s13 offen offset:{a*3072+b*256}{flags}", tag='pl')

def reduce_store(p, G):
    D0, D1 = 160, 164
    first = True
    for a in range(2):
        for b in range(3):
            g = G + 4*(3*a+b)
            p(mfma(D0, SEL+4*b+2, g, None if first else D0))
            p(mfma(D1, SEL+4*b, g, None if first else D1))
            first = False
    p(f"""
    v_cvt_pk_bf16_f32 v168, v{D0}, v{D0+1}
    v_cvt_pk_bf16_f32 v169, v{D0+2}, v{D0+3}
    v_cvt_pk_bf16_f32 v170, v{D1}, v{D1+1}
    s_mov_b32 exec_hi, 0x0000ffff
    buffer_store_dwordx3 v[168:170], v{V_OUT}, {srd(SRD_OUT)}, s11 offen
    s_mov_b64 exec, -1
    """)

def finish(p, name, slotbase=0):
    stamps_out(p, slotbase)
    p(f"L_end_{name}:\ns_endpgm")

kernels = []; launches = []
def add_kernel(name, build, lds):
    size = 0
    for it in range(2):
        p = Prog(); stamp_n[0] = 0
        build(p, name, size)
        txt = p.text()
        size = est_size(txt)
    v, a = p.maxv()
    acc = (v + 3) // 4 * 4
    kernels.append(kernel_text(name, txt, acc + a, accum=acc))
    launches.append(f"; @launch kernel={name} grid=(256,1,1) block=(256,1,1) lds={lds}")
    print(name, "vgpr", v, "agpr", a, "nops", p.nops, "approx bytes", size)

import subprocess, tempfile, os
def est_size(txt):
    with tempfile.TemporaryDirectory() as d:
        f = os.path.join(d, "a.s"); o = os.path.join(d, "a.o")
        open(f, "w").write('.amdgcn_target "amdgcn-amd-amdhsa--gfx950"\n.text\n' + txt)
        r = subprocess.run(["clang", "-x", "assembler", "-target", "amdgcn-amd-amdhsa", "-mcpu=gfx950", "-c", f, "-o", o], capture_output=True, text=True)
        assert r.returncode == 0, r.stderr[:3000]
        s = subprocess.run(["llvm-readelf", "-S", o], capture_output=True, text=True).stdout
        for ln in s.split("\n"):
            m = re.search(r"\.text\s+PROGBITS\s+\S+\s+\S+\s+(\S+)", ln)
            if m: return (int(m.group(1), 16) - 64) & ~3
    return 0

def k1(p, name, size):
    prologue(p, name, size)
    addr_phaseA(p)
    srds(p, ['x', 'wq', 'k', 'v', 'ws'])
    phaseA(p)
    p(f"v_mov_b32 v{V_TAG}, 0")
    p(f"v_lshlrev_b32 v{V_OG}, 4, v{V_L}")
    o_pack_granules(p, GL)
    p(f"""
    s_lshl_b32 s60, s2, 2
    s_add_u32 s60, s60, s{S_W}
    s_mul_i32 s60, s60, 6144
    s_add_u32 s61, s60, 4096
    """)
    for gi in range(6):
        p(f"buffer_store_dwordx4 {vr(GL+4*gi)}, v{V_OG}, {srd(SRD_WS)}, s{60 if gi < 4 else 61} offen offset:{1024*(gi%4)}", tag='os')
    finish(p, name, 0)

def k2(p, name, size):
    prologue(p, name, size)
    consts_phaseB(p)
    addr_phaseB(p)
    srds(p, ['wo', 'ws', 'out'])
    p(f"v_lshlrev_b32 v{V_OG}, 4, v{V_L}")
    p(f"v_mov_b32 v{V_TAG}, 0")
    GS = [144, 208, 232 - 64, 232]
    GS = [140, 208, 232, 140]
    for q in range(4):
        p(f"""
        s_add_u32 s60, s{S_J}, {q}
        s_and_b32 s60, s60, 3
        s_lshl_b32 s60, s60, 3
        s_andn2_b32 s61, s2, 0x18
        s_or_b32 s60, s60, s61
        s_lshl_b32 s60, s60, 2
        s_add_u32 s60, s60, s{S_W}
        s_mul_i32 s60, s60, 6144
        s_add_u32 s61, s60, 4096
        """)
        if q == 3:
            p.wait_vm(('og', 0)); unpack_granules(p, GS[0], OF)
        for gi in range(6):
            p(f"buffer_load_dwordx4 {vr(GS[q]+4*gi)}, v{V_OG}, {srd(SRD_WS)}, s{60 if gi < 4 else 61} offen offset:{1024*(gi%4)}", tag=('og', q))
        issue_wo(p, q)
    addr_partial(p)
    for q in range(4):
        p.wait_vm(('wo', q))
        if q: unpack_granules(p, GS[q], OF + 16*q)
        p("s_barrier")
        if q == 0: stamp(p)
        if q == 2:
            p(f"v_add_u32 v{V_B}, {73728}, v{V_B}\nv_add_u32 v{V_B+1}, {73728}, v{V_B+1}")
        gemm_stream(p, phaseB_items(q))
    stamp(p)
    partial_store(p, GL)
    finish(p, name, 0x20000)

def k3(p, name, size):
    prologue(p, name, size)
    srds(p, ['ws', 'out'])
    addr_partial(p)
    partial_load(p, GL)
    selectors(p)
    p.wait_vm_all()
    reduce_store(p, GL)
    finish(p, name, 0x40000)

if args.mode == "list3":
    add_kernel("gqa_a_kernel", k1, 163840)
    add_kernel("gqa_b_kernel", k2, 147456)
    add_kernel("gqa_c_kernel", k3, 0)
open(args.out, "w").write(module_text(launches, kernels))
```
